```python
import torch

def _softmax(x, axis=-1):
    return torch.softmax(x, dim=axis)

def _gelu(x):
    return torch.nn.functional.gelu(x, approximate='tanh')

def _silu(x):
    return torch.nn.functional.silu(x)

def _sigmoid(x):
    return torch.sigmoid(x)

def _layernorm(x, axis=-1, eps=1e-05):
    m = x.mean(dim=axis, keepdim=True)
    v = x.var(dim=axis, keepdim=True, unbiased=False)
    return (x - m) / torch.sqrt(v + eps)

def _scatter_add(tgt, idx, src, axis=0):
    return tgt.clone().index_add_(axis, idx, src)

def _segment_sum(src, seg, n):
    out = torch.zeros((n,) + src.shape[1:], dtype=src.dtype)
    return out.index_add_(0, seg, src)

def _pad(x, pw):
    flat = tuple((v for pair in reversed(pw) for v in pair))
    return torch.nn.functional.pad(x, flat)
kernel_name = 'recurrent_scan__spectral_gfnet__mixer_gmlp__prompt'

def setup_inputs():

    _w = lambda a: (lambda t: t.to(torch.bfloat16) if t.is_floating_point() else t)(torch.as_tensor(a))

    def _A_setup():
        B, S, D = (1, 2048, 512)
        Df = D // 2 + 1
        return {'x': _w((lambda *s: torch.randn(*s, dtype=torch.bfloat16) * 0.05)(B, S, D)), 'w_r': _w((lambda *s: torch.randn(*s, dtype=torch.bfloat16) * 0.2)(S, Df) * 0.02), 'w_i': _w((lambda *s: torch.randn(*s, dtype=torch.bfloat16) * 0.2)(S, Df) * 0.02)}
    _A_in = _A_setup()

    def _B_setup():
        B, S, D, F = (1, 2048, 512, 1376)
        Fh = F // 2
        return {'x': _w((lambda *s: torch.randn(*s, dtype=torch.bfloat16) * 0.05)(B, S, D)), 'w_in': _w((lambda *s: torch.randn(*s, dtype=torch.bfloat16) * 0.4)(D, 2 * Fh)), 'w_sp': _w(0.01 * (lambda *s: torch.randn(*s, dtype=torch.bfloat16) * 0.4)(S, S)), 'b_sp': _w(1.0 + 0.01 * (lambda *s: torch.randn(*s, dtype=torch.bfloat16) * 0.1)(S)), 'w_out': _w((lambda *s: torch.randn(*s, dtype=torch.bfloat16) * 0.1)(Fh, D))}
    _B_in = _B_setup()
    return {'A_x': _A_in['x'], 'A_w_r': _A_in['w_r'], 'A_w_i': _A_in['w_i'], 'B_x': _B_in['x'], 'B_w_in': _B_in['w_in'], 'B_w_sp': _B_in['w_sp'], 'B_b_sp': _B_in['b_sp'], 'B_w_out': _B_in['w_out']}

def reference(A_x, A_w_r, A_w_i, B_x, B_w_in, B_w_sp, B_b_sp, B_w_out):

    def _A_ref(x, w_r, w_i):
        B, S, D = x.shape
        X = (lambda x, axes=(-2, -1): torch.fft.rfft2(x.float(), dim=axes))(x, axes=(-2, -1))
        W = w_r + 1j * w_i
        X = X * W
        y = (lambda x, s, axes=(-2, -1): torch.fft.irfft2(x, s=s, dim=axes).to(torch.bfloat16))(X, (S, D), axes=(-2, -1))
        return y

    def _B_ref(x, w_in, w_sp, b_sp, w_out):
        B, S, D = x.shape
        F = w_in.shape[-1]
        Fh = F // 2
        z = _gelu(torch.einsum('bsd,df->bsf', x, w_in))
        z1 = z[..., :Fh].clone()
        z2 = _layernorm(z[..., Fh:], axis=-1)
        g = torch.einsum('ts,bsf->btf', w_sp, z2) + b_sp[None, :, None]
        return torch.einsum('bsf,fd->bsd', z1 * g, w_out)
    x = A_x
    xn = _layernorm(x, axis=-1)
    s = _A_ref(xn, A_w_r, A_w_i)
    g = _silu(_B_ref(xn, B_w_in, B_w_sp, B_b_sp, B_w_out))
    return x + s * g
```

```python
import re

class I:
    __slots__ = ('t', 'tag', 'kind')
    def __init__(self, t, tag=None, kind=None):
        self.t = t; self.tag = tag; self.kind = kind
    def __repr__(self): return f'I({self.t!r},{self.tag})'

def WAITVM(tag): return I('', tag, 'waitvm')
def WAITVM0(): return I('', None, 'waitvm0')
def WAITLG0(): return I('', None, 'waitlg0')
def WAITLG(tag): return I('', tag, 'waitlg')
def FLUSH(): return I('', None, 'flush')
def RAW(t): return I(t, None, 'raw')

_reg = re.compile(r'^(-|abs\()?([vas])(\d+|\[(\d+):(\d+)\])\)?$')
def regs_of(op):
    op = op.strip()
    if op.startswith('-'): op = op[1:]
    if op.startswith('abs(') or op.startswith('|'):
        op = op.replace('abs(', '').replace(')', '').replace('|', '')
    if op in ('vcc', 'vcc_lo', 'vcc_hi'): return [('s', 'vcc')]
    if op == 'exec': return [('s', 'exec')]
    if op == 'm0': return [('s', 'm0')]
    m = re.match(r'^([vas])(\d+)$', op)
    if m: return [(m.group(1), int(m.group(2)))]
    m = re.match(r'^([vas])\[(\d+):(\d+)\]$', op)
    if m: return [(m.group(1), r) for r in range(int(m.group(2)), int(m.group(3)) + 1)]
    return []

TRANS = ('v_exp_f32', 'v_log_f32', 'v_rcp_f32', 'v_rsq_f32', 'v_sqrt_f32', 'v_sin_f32', 'v_cos_f32')
def parse(t):
    t = t.split(';')[0].strip()
    parts = t.split(None, 1)
    mn = parts[0]
    rest = parts[1] if len(parts) > 1 else ''
    ops = [o.strip() for o in rest.split(',')] if rest else []
    mods = ''
    if ops:
        sp = ops[-1].split(None, 1)
        ops[-1] = sp[0]
        if len(sp) > 1: mods = sp[1]
    base = re.sub(r'_e(32|64)$', '', mn)
    R = regs_of
    if base.startswith('v_mfma'):
        return base, 'mfma', R(ops[0]), R(ops[1]) + R(ops[2]) + R(ops[3]), dict(A=R(ops[1]) + R(ops[2]), C=R(ops[3]), passes=8 if '32x32' in base else 4)
    if base.startswith('ds_read') or base.startswith('ds_bpermute') or base.startswith('ds_swizzle'):
        return base, 'ds', R(ops[0]), sum((R(o) for o in ops[1:]), []), {}
    if base.startswith('ds_write'):
        return base, 'ds', [], sum((R(o) for o in ops), []), {}
    if base.startswith('buffer_load'):
        if 'lds' in mods.split():
            return base, 'vm', [], sum((R(o) for o in ops), []) + [('s', 'm0')], dict(dma=True)
        return base, 'vm', R(ops[0]), sum((R(o) for o in ops[1:]), []), {}
    if base.startswith('buffer_store'):
        wide = base.endswith('x4') or base.endswith('x3')
        return base, 'vm', [], sum((R(o) for o in ops), []), dict(store=R(ops[0]) if wide else [])
    if base.startswith('buffer_'):
        return base, 'vm', [], sum((R(o) for o in ops), []), {}
    if base.startswith('s_load') or base.startswith('s_memtime') or base.startswith('s_memrealtime'):
        return base, 'smem', R(ops[0]), sum((R(o) for o in ops[1:]), []), {}
    if base.startswith('v_'):
        d = R(ops[0]); s = sum((R(o) for o in ops[1:]), [])
        if base in ('v_fmac_f32', 'v_dot2c_f32_bf16', 'v_pk_fmac_f16'): s = s + d
        if base.startswith('v_permlane') and 'swap' in base: d = d + R(ops[1]); s = s + R(ops[0])
        if base in ('v_add_co_u32', 'v_sub_co_u32', 'v_addc_co_u32'): d = d + R(ops[1])
        if base == 'v_cndmask_b32' and len(ops) == 3: s = s + [('s', 'vcc')]
        return base, 'valu', d, s, dict(trans=base in TRANS, dpp=('dpp' in mn or 'row_' in mods or 'quad_perm' in mods))
    if base.startswith('s_'):
        if base in ('s_waitcnt', 's_barrier', 's_nop', 's_sleep', 's_endpgm', 's_setprio') or base.startswith('s_cbranch') or base == 's_branch':
            return base, 'sctl', [], [], {}
        if base.startswith('s_cmp'):
            return base, 'salu', [], sum((R(o) for o in ops), []), {}
        d = R(ops[0]); s = sum((R(o) for o in ops[1:]), [])
        if 'saveexec' in base: d = d + [('s', 'exec')]
        return base, 'salu', d, s, {}
    raise ValueError('cannot parse ' + t)

def resolve_waits(prog):
    out = []
    vm = []
    lg = []
    def emit_wait(nv=None, nl=None):
        p = []
        if nv is not None: p.append(f'vmcnt({min(nv, 63)})')
        if nl is not None: p.append(f'lgkmcnt({min(nl, 15)})')
        out.append(I('s_waitcnt ' + ' '.join(p)))
    def need(q, pred):
        idx = -1
        for k, e in enumerate(q):
            if pred(e): idx = k
        return idx
    for ins in prog:
        if ins.kind == 'raw': out.append(ins); continue
        if ins.kind == 'flush': vm = []; lg = []; continue
        if ins.kind == 'waitvm0':
            if vm: emit_wait(nv=0)
            vm = []; continue
        if ins.kind == 'waitlg0':
            if lg: emit_wait(nl=0)
            lg = []; continue
        if ins.kind in ('waitvm', 'waitlg'):
            q = vm if ins.kind == 'waitvm' else lg
            idx = need(q, lambda e: e['tag'] == ins.tag)
            if idx >= 0:
                n = len(q) - 1 - idx
                if ins.kind == 'waitvm':
                    emit_wait(nv=n); vm = vm[len(vm) - min(n, 63):] if n else []
                else:
                    if any(e.get('smem') for e in lg): n = 0
                    emit_wait(nl=n); lg = lg[len(lg) - min(n, 15):] if n else []
            continue
        mn, cls, d, s, ex = parse(ins.t)
        touched = set(d) | set(s)
        iv = need(vm, lambda e: touched & e['dsts'])
        il = need(lg, lambda e: touched & e['dsts'])
        nv = nl = None
        if iv >= 0:
            nv = len(vm) - 1 - iv; vm = vm[len(vm) - min(nv, 63):] if nv else []
        if il >= 0:
            nl = len(lg) - 1 - il
            if any(e.get('smem') for e in lg): nl = 0
            lg = lg[len(lg) - min(nl, 15):] if nl else []
        if nv is not None or nl is not None: emit_wait(nv, nl)
        if mn == 's_waitcnt':
            raise ValueError('raw waitcnt not allowed outside RAW blocks: ' + ins.t)
        out.append(ins)
        if cls == 'vm': vm.append(dict(tag=ins.tag, dsts=set(d)))
        elif cls == 'ds': lg.append(dict(tag=ins.tag, dsts=set(d)))
        elif cls == 'smem': lg.append(dict(tag=ins.tag, dsts=set(d), smem=True))
    return out

def fix_hazards(prog):
    out = []
    hist = []
    pos = 0
    nops = 0
    for ins in prog:
        if ins.kind == 'raw':
            out.append(ins)
            t = ins.t.strip()
            if t and not t.endswith(':') and not t.startswith('.') and not t.startswith(';'):
                try:
                    mn, cls, d, s, ex = parse(t)
                except Exception:
                    pos += 1; continue
                hist.append((pos, cls, mn, set(d), set(s), ex)); pos += 1
            continue
        mn, cls, d, s, ex = parse(ins.t)
        d = set(d); s = set(s)
        req = 0
        def need(p, n):
            nonlocal req
            gap = pos - p - 1
            if n - gap > req: req = n - gap
        for (p, c2, m2, d2, s2, e2) in hist[-40:]:
            if pos - p > 24: continue
            vd2 = {r for r in d2 if r[0] in 'va'}
            sd2 = {r for r in d2 if r[0] == 's'}
            if c2 == 'valu':
                if cls == 'mfma' and vd2 & s: need(p, 2)
                if cls == 'valu':
                    if e2.get('trans') and not ex.get('trans') and vd2 & s: need(p, 1)
                    if e2.get('trans') and ex.get('trans') and vd2 & s: need(p, 1)
                    if sd2 & s: need(p, 2)
                    if mn in ('v_readfirstlane_b32', 'v_readlane_b32') and vd2 & s: need(p, 1)
                    if (ex.get('dpp') or mn.startswith('v_permlane')) and vd2 & s: need(p, 2)
                if cls == 'vm' and sd2 & s: need(p, 5)
                if cls in ('vm', 'ds') and e2.get('trans') and vd2 & s: need(p, 1)
                if cls == 'salu' and sd2 & s: need(p, 1)
                if cls == 'sctl' and mn.startswith('s_cbranch_vcc') and ('s', 'vcc') in sd2: need(p, 1)
            if c2 == 'mfma':
                ps = e2['passes']; big = 12 if ps == 8 else 8
                if cls == 'mfma':
                    if vd2 & set(ex['A']): need(p, big)
                    cset = set(ex['C'])
                    if vd2 & cset:
                        if not (cset == vd2 and ex['passes'] == ps): need(p, 10 if ps == 8 else 6)
                    elif vd2 & d: need(p, 10 if ps == 8 else 6)
                elif cls in ('valu', 'vm', 'ds'):
                    if vd2 & (s | d): need(p, big)
                    if cls == 'valu' and set(e2['C']) & d: need(p, 7 if ps == 8 else 3)
            if c2 == 'vm' and e2.get('store'):
                if set(e2['store']) & d: need(p, 2)
            if c2 == 'salu' and ('s', 'm0') in d2 and cls == 'vm' and ex.get('dma'): need(p, 1)
        while req > 0:
            k = min(req, 16)
            out.append(I(f's_nop {k-1}')); pos += k; req -= k; nops += k
        out.append(ins)
        if mn == 's_nop':
            pos += int(ins.t.split()[1]) + 1
        else:
            hist.append((pos, cls, mn, d, s, ex)); pos += 1
    return out, nops

def interleave(main, fill, is_slot=None, per=None, start=0):
    if is_slot is None: is_slot = lambda x: x.kind is None and x.t.startswith('v_mfma')
    slots = [k for k, x in enumerate(main) if is_slot(x)][start:]
    if not slots: return main + fill
    out = []; fi = 0; n = len(slots); si = 0
    slotset = {k: m for m, k in enumerate(slots)}
    for k, x in enumerate(main):
        out.append(x)
        if k in slotset:
            m = slotset[k] + 1
            upto = min(len(fill), (len(fill) * m + n - 1) // n if per is None else per * m)
            while fi < upto: out.append(fill[fi]); fi += 1
    out.extend(fill[fi:])
    return out

def render(prog):
    return '\n'.join(('    ' + x.t) if not x.t.strip().endswith(':') else x.t for x in prog)
```

```python
import sys, struct, math, os
sys.path.insert(0, os.path.dirname(os.path.abspath(__file__)))
from asmlib import *

NAME = 'recurrent_scan__spectral_gfnet__mixer_gmlp__prompt_kernel'
OPT = dict(stamps=False, stop=None)

WS_E = 0
WS_FA, WS_FZ, WS_FU = 0x1000, 0x2000, 0x3000
WS_FY = 0x4000
WS_ST = 0x10000
WS_DBG = 0x80000
WS_Y1 = 0x100000
WS_WT = 0x300000
WS_Z2 = 0x500000
WS_Y2 = 0x800000
WS_U = 0xA00000
WS_SIZE = 0x1000000
OOB = 0x40000000
LX = 0
LW = 65536; WSLOT = 12288
LZ2 = 114688; LWI = 128512; LY1 = 136704; LXS = 145920; LSC = 146432; LDUM = 148480; LZ1 = 150016
LFX = LW; LFE = LW + 8192
RING = 33792; RSLOT = 11264
LY2 = 0; LWO = 65536; LU = 0
PITCH = 144
LDS_BYTES = 163840

def fl(x): return '0x%08x' % struct.unpack('<I', struct.pack('<f', x))[0]
def v(n, k=1): return f'v{n}' if k == 1 else f'v[{n}:{n+k-1}]'
def a(n, k=1): return f'a{n}' if k == 1 else f'a[{n}:{n+k-1}]'
def s(n, k=1): return f's{n}' if k == 1 else f's[{n}:{n+k-1}]'

sX, sWR, sWI, sWIN, sWSP, sB, sWO, sOUT, sWS, sCODE = 8, 12, 16, 20, 24, 28, 32, 36, 40, 44
sI, sJ, sWV, sTAG = 48, 49, 50, 51
sT0, sT1, sT2, sT3 = 52, 53, 54, 55
sM1, sM2, sM3, sMZ = 56, 58, 60, 62
sK2, sONE = 64, 66
sMT = 68
sI3, sJ3, sRH, sCH = 70, 71, 72, 73
sOFX, sOFW, sLB, sOFA = 74, 75, 76, 77
sSPIN, sOFB, sK, sP = 78, 79, 80, 81
sRB = 82
sST = 84
T = list(range(1, 8))
vW = [8, 9, 10]; vXR = [11, 12, 13, 14]; vAR = vXR; vWR = [15, 16, 17]; vXA, vXB = 18, 19
vONE = 20; WF = 24
ACC = lambda t, u: 48 + (t * 3 + u) * 4
CS = lambda u: 72 + 4 * u
vSUM, vGRAM = 84, 88
vR = lambda t: 92 + 4 * t
vMR = lambda t: 100 + 4 * t
vP = list(range(108, 119)); vJUNK = 119
vBIAS = 120
vZW = [124, 125]; vST, vLR = 126, 127
DC = lambda st, ri: 128 + (st * 2 + ri) * 4
C64 = lambda ks: 192 + 4 * ks
S64 = lambda ks: 200 + 4 * ks
N64 = lambda ks: 208 + 4 * ks
C32 = lambda mt: 216 + 4 * mt
S32 = lambda mt: 224 + 4 * mt
N32 = lambda mt: 232 + 4 * mt
TC, TS = 240, 248

class B(list):
    def e(self, t, tag=None): self.append(I(t, tag)); return self
    def x(self, o):
        if isinstance(o, list): self.extend(o)
        else: self.append(o)
        return self

nstamp = [0]
def stamp():
    b = B()
    if OPT['stamps']:
        k = nstamp[0]; nstamp[0] += 1
        assert k < 16
        b.x(WAITLG0()); b.x(RAW(f's_memtime s[100:101]')); b.x(RAW('s_waitcnt lgkmcnt(0)')); b.x(RAW(f's_mov_b32 s{sST+k}, s100'))
    return b
def barrier():
    return B().x(WAITLG0()).e('s_barrier')
def mfma16(d, x, y, c): return I(f'v_mfma_f32_16x16x32_bf16 {v(d,4)}, {x}, {y}, {c}')
def mfma32(d, x, y, c): return I(f'v_mfma_f32_32x32x16_bf16 {v(d,16)}, {x}, {y}, {c}')
def dma(voff, srd, soff, m0src, m0imm, tag, soff_calc=None, sc=''):
    b = B()
    b.e(f's_add_u32 m0, {s(m0src)}, {m0imm}')
    if soff_calc: b.e(soff_calc)
    b.e(f'buffer_load_dwordx4 {v(voff)}, {s(srd,4)}, {soff} offen {sc} lds'.replace('  ', ' '), tag)
    return b
lab = [0]
def poll_check(loads, tagregs):
    n = lab[0]; lab[0] += 1
    b = B()
    def cmp(bb, raw):
        em = (lambda t: bb.x(RAW(t))) if raw else bb.e
        em(f'v_cmp_ne_u32 vcc, {s(sTAG)}, {v(tagregs[0])}')
        for r in tagregs[1:]:
            em(f'v_cmp_ne_u32 {s(sMT,2)}, {s(sTAG)}, {v(r)}')
            if raw: em('s_nop 0')
            em(f's_or_b64 vcc, vcc, {s(sMT,2)}')
    cmp(b, False)
    b.e(f's_cbranch_scc0 L_ok{n}')
    b.x(RAW(f's_mov_b32 {s(sSPIN)}, 0x10000'))
    b.x(RAW(f'L_poll{n}:'))
    b.x(RAW('s_sleep 1'))
    for l in loads: b.x(RAW(l))
    b.x(RAW(f's_sub_u32 {s(sSPIN)}, {s(sSPIN)}, 1'))
    b.x(RAW('s_cbranch_scc1 L_end'))
    b.x(RAW('s_waitcnt vmcnt(0)'))
    cmp(b, True)
    b.x(RAW(f's_cbranch_scc1 L_poll{n}'))
    b.x(RAW(f'L_ok{n}:'))
    return b

def lane(dst, what):
    b = B()
    if what == 'l': b.e(f'v_and_b32 {v(dst)}, 63, v0')
    elif what == 'l15': b.e(f'v_and_b32 {v(dst)}, 15, v0')
    elif what == 'l31': b.e(f'v_and_b32 {v(dst)}, 31, v0')
    elif what == 'q': b.e(f'v_bfe_u32 {v(dst)}, v0, 4, 2')
    elif what == 'h': b.e(f'v_bfe_u32 {v(dst)}, v0, 5, 1')
    elif what == 'rr': b.e(f'v_bfe_u32 {v(dst)}, v0, 2, 2')
    elif what == 'cc': b.e(f'v_and_b32 {v(dst)}, 3, v0')
    elif what == 'l7': b.e(f'v_and_b32 {v(dst)}, 7, v0')
    elif what == 'l>>3': b.e(f'v_bfe_u32 {v(dst)}, v0, 3, 3')
    return b

def trig_pairs(items, tmp):
    b = B(); pend = []
    for p in range(0, len(items), 2):
        o = 6 * ((p // 2) & 1)
        t = tmp[o:o+6]
        for k in range(2):
            m, K, ad, _, _ = items[p+k]
            if K == 0: b.e(f'v_mov_b32 {v(t[k])}, {v(ad)}')
            else: b.e(f'v_fmamk_f32 {v(t[k])}, {v(m)}, {fl(K)}, {v(ad)}')
        b.x(pend); pend = []
        b.e(f'v_cos_f32 {v(t[2])}, {v(t[0])}'); b.e(f'v_cos_f32 {v(t[3])}, {v(t[1])}')
        b.e(f'v_sin_f32 {v(t[4])}, {v(t[0])}'); b.e(f'v_sin_f32 {v(t[5])}, {v(t[1])}')
        dC, dS = items[p][3], items[p][4]
        pend = [I(f'v_cvt_pk_bf16_f32 {v(dC)}, {v(t[2])}, {v(t[3])}'), I(f'v_cvt_pk_bf16_f32 {v(dS)}, {v(t[4])}, {v(t[5])}')]
    b.x(pend)
    return b

def diag_select(dsum, dsq):
    b = B()
    for d, src in ((dsum, vSUM), (dsq, vGRAM)):
        b.e(f'v_cndmask_b32 {v(d)}, {v(src)}, {v(src+1)}, {s(sM1,2)}')
        b.e(f'v_cndmask_b32 {v(d)}, {v(d)}, {v(src+2)}, {s(sM2,2)}')
        b.e(f'v_cndmask_b32 {v(d)}, {v(d)}, {v(src+3)}, {s(sM3,2)}')
    return b
def mean_rstd(dsum, dsq, n, tmp):
    b = B()
    b.e(f'v_mul_f32 {v(dsum)}, {fl(1.0/n)}, {v(dsum)}')
    b.e(f'v_mul_f32 {v(tmp)}, {v(dsum)}, {v(dsum)}')
    b.e(f'v_fmamk_f32 {v(dsq)}, {v(dsq)}, {fl(1.0/n)}, {v(7)}')
    b.e(f'v_sub_f32 {v(dsq)}, {v(dsq)}, {v(tmp)}')
    b.e(f'v_max_f32 {v(dsq)}, {v(dsq)}, {v(7)}')
    b.e(f'v_rsq_f32 {v(tmp)}, {v(dsq)}')
    b.e(f'v_mul_f32 {v(dsq)}, {v(dsum)}, {v(tmp)}')
    b.e(f'v_mov_b32 {v(dsum)}, {v(tmp)}')
    return b

def seg_init():
    b = B()
    b.x(RAW('s_cmp_ge_u32 s2, 256')); b.x(RAW('s_cbranch_scc1 L_end'))
    for reg, off in ((sX, 0), (sWIN, 32), (sWS, 80), (sWR, 8), (sWI, 16), (sWSP, 40), (sB, 48), (sWO, 56), (sOUT, 64)):
        b.e(f's_load_dwordx2 {s(reg,2)}, s[0:1], {off}', 'karg')
    b.e(f's_getpc_b64 {s(sCODE,2)}'); b.x(RAW('L_pc0:'))
    b.e(f's_mov_b32 {s(sCODE+2)}, L_end-L_pc0'); b.e(f's_mov_b32 {s(sCODE+3)}, 0x20000')
    b.e(f's_lshr_b32 {s(sT0)}, s2, 3'); b.e(f's_lshl_b32 {s(sT0)}, {s(sT0)}, 11')
    b.e(f'v_lshlrev_b32 v1, 7, v0'); b.e(f'v_mov_b32 v2, {OOB}'); b.e('v_cmp_gt_u32 vcc, 16, v0')
    b.e('v_cndmask_b32 v1, v2, v1, vcc')
    b.e(f'buffer_load_dword {v(vJUNK)}, v1, {s(sCODE,4)}, {s(sT0)} offen', 'pf')
    b.e(f's_and_b32 {s(sT0)}, s2, 7'); b.e(f's_lshr_b32 {s(sT1)}, s2, 3')
    b.e(f's_lshr_b32 {s(sI)}, {s(sT0)}, 1'); b.e(f's_lshl_b32 {s(sI)}, {s(sI)}, 3')
    b.e(f's_and_b32 {s(sJ)}, {s(sT0)}, 1'); b.e(f's_lshl_b32 {s(sJ)}, {s(sJ)}, 2')
    b.e(f's_add_u32 {s(sI3)}, {s(sI)}, {s(sJ)}')
    b.e(f's_and_b32 {s(sT2)}, {s(sT1)}, 7'); b.e(f's_add_u32 {s(sI)}, {s(sI)}, {s(sT2)}')
    b.e(f's_lshr_b32 {s(sT2)}, {s(sT1)}, 3'); b.e(f's_add_u32 {s(sJ)}, {s(sJ)}, {s(sT2)}')
    b.e(f's_and_b32 {s(sT2)}, {s(sT1)}, 3'); b.e(f's_add_u32 {s(sI3)}, {s(sI3)}, {s(sT2)}')
    b.e(f's_lshr_b32 {s(sJ3)}, {s(sT1)}, 2')
    b.e('v_lshrrev_b32 v1, 6, v0'); b.e(f'v_readfirstlane_b32 {s(sWV)}, v1')
    b.e(f's_lshr_b32 {s(sRH)}, {s(sWV)}, 1'); b.e(f's_and_b32 {s(sCH)}, {s(sWV)}, 1')
    for reg, size in ((sX, 2097152), (sWIN, 512*2752), (sWS, WS_SIZE), (sWR, 2048*514), (sWI, 2048*514), (sWSP, 8388608), (sB, 4096), (sWO, 688*1024), (sOUT, 2097152)):
        b.e(f's_mov_b32 {s(reg+2)}, {size}'); b.e(f's_mov_b32 {s(reg+3)}, 0x20000')
    b.x(lane(1, 'l>>3')); b.x(lane(2, 'l7')); b.x(lane(3, 'q'))
    b.e(f's_lshl_b32 {s(sT0)}, {s(sWV)}, 4')
    b.e(f'v_add_u32 v4, {s(sT0)}, v1')
    b.e('v_xor_b32 v5, v2, v3'); b.e('v_lshlrev_b32 v5, 4, v5')
    b.e(f'v_lshl_add_u32 {v(vXA)}, v4, 10, v5')
    b.e(f'v_xor_b32 {v(vXB)}, 64, {v(vXA)}'); b.e(f'v_add_u32 {v(vXB)}, 8192, {v(vXB)}')
    b.e(f'v_lshl_add_u32 {v(vP[0])}, v1, 12, v5')
    b.e(f'v_xor_b32 {v(vP[1])}, 64, {v(vP[0])}'); b.e(f'v_add_u32 {v(vP[1])}, 32768, {v(vP[1])}')
    b.x(lane(6, 'l'))
    b.e(f's_mul_i32 {s(sT1)}, {s(sWV)}, {16*2752}')
    for n in range(3):
        b.e(f'v_add_u32 v1, {64*n}, v6'); b.e('v_mul_u32_u24 v2, 43691, v1'); b.e('v_lshrrev_b32 v2, 19, v2')
        b.e('v_mul_u32_u24 v3, 12, v2'); b.e('v_sub_u32 v3, v1, v3')
        b.e('v_lshrrev_b32 v4, 2, v2'); b.e('v_and_b32 v4, 2, v4'); b.e('v_xor_b32 v3, v3, v4')
        b.e('v_mul_u32_u24 v2, 2752, v2'); b.e('v_lshl_add_u32 v2, v3, 4, v2'); b.e(f'v_add_u32 v2, {s(sT1)}, v2')
        b.e('v_cmp_gt_u32 vcc, 11, v3'); b.e(f'v_mov_b32 v4, {OOB}'); b.e(f'v_cndmask_b32 {v(vW[n])}, v4, v2, vcc')
    b.e(f's_lshl_b32 {s(sOFX)}, {s(sI)}, 16')
    b.e(f's_mul_i32 {s(sOFW)}, {s(sJ)}, 172')
    b.e(f's_lshl_b32 {s(sLB)}, {s(sWV)}, 11')
    b.e(f's_mul_i32 {s(sT3)}, {s(sWV)}, 3072')
    b.x(WAITLG0())
    b.e(f's_load_dword {s(sTAG)}, {s(sWS,2)}, {WS_E}', 'epoch')
    for c in range(8):
        b.x(x_dma(c))
        if c < 4: b.x(w_dma(c))
    return b

def x_dma(c):
    b = B()
    b.x(dma(vXA, sX, s(sT0), sLB, LX + c*8192, f'x{c}', f's_add_u32 {s(sT0)}, {s(sOFX)}, {c*128}'))
    b.x(dma(vXB, sX, s(sT0), sLB, LX + c*8192 + 1024, f'x{c}', 's_nop 0'))
    return b
def w_dma(g):
    b = B()
    off = (1376 if g < 8 else 0) + (g & 7) * 64 * 2752
    for n in range(3):
        b.x(dma(vW[n], sWIN, s(sT0), sT3, LW + (g % 4) * WSLOT + n * 1024, f'w{g}', f's_add_u32 {s(sT0)}, {s(sOFW)}, {off}' if n == 0 else 's_nop 0'))
    return b

def seg_consts():
    b = B()
    tmp = list(range(WF, WF + 12))
    b.x(lane(1, 'cc'))
    for m, k in ((sM1, 1), (sM2, 2), (sM3, 3)): b.e(f'v_cmp_eq_u32 {s(m,2)}, {k}, v1')
    b.x(lane(1, 'l15')); b.e(f's_lshl_b32 {s(sT0)}, {s(sCH)}, 4'); b.e(f'v_add_u32 v2, {s(sT0)}, v1')
    b.e(f'v_cmp_gt_u32 {s(sMZ,2)}, 22, v2')
    b.e(f's_mov_b32 {s(sK2)}, {fl(-0.1029432397)}'); b.e(f's_mov_b32 {s(sK2+1)}, {fl(-0.1029432397)}')
    b.e(f's_mov_b32 {s(sONE)}, 1.0'); b.e(f's_mov_b32 {s(sONE+1)}, 1.0')
    for r in range(4): b.e(f'v_mov_b32 {v(vONE+r)}, 0x3f803f80')
    b.e(f's_lshl_b32 {s(sT1)}, {s(sJ)}, 5'); b.e(f's_add_u32 {s(sT1)}, {s(sT1)}, 1')
    b.e(f'v_add_u32 v2, {s(sT1)}, v2'); b.e('v_cvt_f32_u32 v2, v2'); b.e(f'v_mul_f32 v2, {fl(-1/512)}, v2')
    b.x(lane(3, 'q')); b.e('v_lshlrev_b32 v3, 3, v3'); b.e('v_cvt_f32_u32 v3, v3')
    b.e('v_mul_f32 v4, v2, v3')
    items = [(2, float(32*st+e), 4, DC(st, 0) + e//2, DC(st, 1) + e//2) for st in range(8) for e in range(8)]
    b.x(trig_pairs(items, tmp))
    b.e(f's_lshl_b32 {s(sT0)}, {s(sWV)}, 4'); b.e(f'v_add_u32 v2, {s(sT0)}, v1'); b.e('v_cvt_f32_u32 v2, v2')
    b.e(f'v_mul_f32 v5, {fl(1/64)}, v2'); b.e('v_mul_f32 v4, v5, v3')
    items = [(5, float(32*ks+e), 4, C64(ks) + e//2, S64(ks) + e//2) for ks in range(2) for e in range(8)]
    b.x(trig_pairs(items, tmp))
    b.e(f'v_mul_f32 v5, {fl(1/2048)}, v2'); b.e('v_mul_f32 v4, v5, v3')
    for i in range(8):
        t = tmp[i & 3]
        if i == 0: b.e(f'v_mov_b32 {v(t)}, v4')
        else: b.e(f'v_fmamk_f32 {v(t)}, v5, {fl(float(i))}, v4')
        b.e(f'v_cos_f32 {v(TC+i)}, {v(t)}'); b.e(f'v_sin_f32 {v(TS+i)}, {v(t)}')
    b.e('v_lshrrev_b32 v2, 2, v1'); b.e('v_and_b32 v5, 3, v1'); b.e('v_lshl_add_u32 v2, v2, 3, v5'); b.e('v_cvt_f32_u32 v2, v2')
    for mt in range(2):
        if mt: b.e('v_add_f32 v2, 4.0, v2')
        b.e(f'v_mul_f32 v5, {fl(1/32)}, v2'); b.e('v_mul_f32 v4, v5, v3')
        b.x(trig_pairs([(5, float(e), 4, C32(mt) + e//2, S32(mt) + e//2) for e in range(8)], tmp))
    for r in range(8):
        b.e(f'v_xor_b32 {v(N64(0)+r)}, 0x80008000, {v(S64(0)+r)}'); b.e(f'v_xor_b32 {v(N32(0)+r)}, 0x80008000, {v(S32(0)+r)}')
    b.x(lane(3, 'q')); b.e('v_lshrrev_b32 v2, 1, v1'); b.e('v_xor_b32 v2, v2, v3'); b.e('v_lshlrev_b32 v2, 4, v2')
    b.e('v_lshl_add_u32 v2, v1, 7, v2')
    b.e(f's_lshl_b32 {s(sT0)}, {s(sWV)}, 11')
    b.e(f'v_add_u32 {v(vXR[0])}, {s(sT0)}, v2'); b.e(f'v_xor_b32 {v(vXR[1])}, 64, {v(vXR[0])}')
    b.e(f'v_xor_b32 {v(vXR[2])}, 2048, {v(vXR[0])}'); b.e(f'v_xor_b32 {v(vXR[3])}, 2048, {v(vXR[1])}')
    b.x(lane(4, 'rr')); b.e('v_lshl_add_u32 v4, v3, 3, v4'); b.e('v_mul_u32_u24 v4, 192, v4')
    b.x(lane(5, 'cc')); b.e('v_lshl_add_u32 v4, v5, 3, v4'); b.e(f'v_add_u32 v4, {LW}, v4')
    b.e('v_and_b32 v5, 1, v3'); b.e(f's_mul_i32 {s(sT0)}, {s(sCH)}, 3')
    for u in range(3):
        b.e(f's_add_u32 {s(sT1)}, {s(sT0)}, {u}'); b.e(f'v_xor_b32 v6, {s(sT1)}, v5'); b.e(f'v_lshl_add_u32 {v(vWR[u])}, v6, 5, v4')
    b.e(f's_mul_i32 {s(sT0)}, {s(sCH)}, {48*PITCH}'); b.e(f's_lshl_b32 {s(sT1)}, {s(sWV)}, 5'); b.e(f's_add_u32 {s(sT0)}, {s(sT0)}, {s(sT1)}')
    b.e(f's_add_u32 {s(sT0)}, {s(sT0)}, {LZ2}')
    b.e(f'v_mul_u32_u24 v2, {PITCH}, v1'); b.e('v_lshl_add_u32 v2, v3, 3, v2'); b.e(f'v_add_u32 {v(vZW[0])}, {s(sT0)}, v2')
    b.e(f's_lshl_b32 {s(sT1)}, {s(sCH)}, 6'); b.e(f's_sub_u32 {s(sT0)}, {s(sT0)}, {s(sT1)}'); b.e(f's_add_u32 {s(sT0)}, {s(sT0)}, 32')
    b.e(f'v_add_u32 {v(vZW[1])}, {s(sT0)}, v2')
    b.e('v_lshrrev_b32 v2, 3, v0'); b.x(lane(4, 'l7')); b.e('v_lshlrev_b32 v4, 4, v4')
    b.e(f'v_lshl_add_u32 {v(vST)}, v2, 12, v4'); b.e(f'v_mul_u32_u24 v2, {PITCH}, v2'); b.e(f'v_add_u32 {v(vLR)}, v2, v4')
    for n in range(2, 11): b.e(f'v_add_u32 {v(vP[n])}, {(n//2)*65536}, {v(vP[n&1])}')
    b.x(lane(2, 'l')); b.e(f'v_mov_b32 v4, {OOB}'); b.e('v_cmp_gt_u32 vcc, 48, v2'); b.e(f'v_cndmask_b32 {v(vP[10])}, v4, {v(vP[10])}, vcc')
    b.x(WAITLG0())
    b.e(f's_add_u32 {s(sTAG)}, {s(sTAG)}, 0x9e3779b9')
    return b

def z_reads(g, st, first_pass):
    b = B(); c = g & 7
    if first_pass:
        for t in range(2):
            b.e(f'ds_read_b128 {a((2*c+st)*8 + 4*t, 4)}, {v(vXR[2*t+st])} offset:{LX + c*8192}')
    for u in range(3):
        for x in range(2):
            b.e(f'ds_read_b64_tr_b16 {v(WF + st*12 + 4*u + 2*x, 2)}, {v(vWR[u])} offset:{(g%4)*WSLOT + st*6144 + x*768}')
    return b
def z_mfma(g, st, first_pass):
    b = B(); c = g & 7; k = 2*c + st
    z = lambda r: '0' if k == 0 else v(r, 4)
    xa = [a(k*8, 4), a(k*8+4, 4)]
    for u in range(3):
        w = v(WF + st*12 + 4*u, 4)
        b.x(mfma16(ACC(0, u), xa[0], w, z(ACC(0, u)))); b.x(mfma16(ACC(1, u), xa[1], w, z(ACC(1, u))))
        b.x(mfma16(CS(u), v(vONE, 4), w, z(CS(u))))
    if first_pass:
        b.x(mfma16(vSUM, xa[0], v(vONE, 4), z(vSUM))); b.x(mfma16(vGRAM, xa[0], xa[0], z(vGRAM)))
    return b
def z_loop(g0, hooks):
    fp = g0 == 0
    b = B()
    def sync(g):
        bb = B(); pre, post = hooks.get(g, ([], []))
        if fp: bb.x(WAITVM(f'x{g}'))
        bb.x(WAITVM(f'w{g}')); bb.x(pre); bb.x(barrier()); bb.x(post)
        return bb
    b.x(sync(g0)); b.x(z_reads(g0, 0, fp))
    for g in range(g0, g0 + 8):
        b.x(z_reads(g, 1, fp)); b.x(z_mfma(g, 0, fp))
        if g < g0 + 7:
            b.x(sync(g + 1))
            if g + 4 < 16 and g + 4 >= 4: b.x(w_dma(g + 4))
            b.x(z_reads(g + 1, 0, fp))
        b.x(z_mfma(g, 1, fp))
    return b

def gelu_epilogue(img_add, mask):
    b = B()
    K1 = 2
    b.e(f'v_mov_b32 v2, {fl(-2.302208198)}'); b.e('v_mov_b32 v3, v2')
    if img_add:
        for t in range(2): b.e(f'v_add_u32 {v(vZW[t])}, {img_add}, {v(vZW[t])}')
    for t in range(2):
        for u in range(3):
            A = ACC(t, u); tm = WF + 12 * ((t*3+u) & 1)
            h0, h1, p0, p1, e0, e1 = tm, tm+2, tm+4, tm+6, tm+8, tm+10
            for hh, o in ((h0, 0), (h1, 2)):
                b.e(f'v_pk_mul_f32 {v(hh,2)}, {v(vMR(t)+o,2)}, {v(CS(u),2)}')
            for hh, o in ((h0, 0), (h1, 2)):
                b.e(f'v_pk_fma_f32 {v(hh,2)}, {v(A+o,2)}, {v(vR(t)+o,2)}, {v(hh,2)} neg_lo:[0,0,1] neg_hi:[0,0,1]')
            for hh, pp in ((h0, p0), (h1, p1)): b.e(f'v_pk_mul_f32 {v(pp,2)}, {v(hh,2)}, {v(hh,2)}')
            for pp in (p0, p1): b.e(f'v_pk_fma_f32 {v(pp,2)}, {v(pp,2)}, {s(sK2,2)}, {v(K1,2)}')
            for hh, pp in ((h0, p0), (h1, p1)): b.e(f'v_pk_mul_f32 {v(pp,2)}, {v(pp,2)}, {v(hh,2)}')
            for r in range(4): b.e(f'v_exp_f32 {v(e0+r)}, {v(p0+r)}')
            for ee in (e0, e1): b.e(f'v_pk_add_f32 {v(ee,2)}, {v(ee,2)}, {s(sONE,2)}')
            for r in range(4): b.e(f'v_rcp_f32 {v(e0+r)}, {v(e0+r)}')
            for hh, ee in ((h0, e0), (h1, e1)): b.e(f'v_pk_mul_f32 {v(hh,2)}, {v(hh,2)}, {v(ee,2)}')
            b.e(f'v_cvt_pk_bf16_f32 {v(p0)}, {v(h0)}, {v(h0+1)}'); b.e(f'v_cvt_pk_bf16_f32 {v(p0+1)}, {v(h1)}, {v(h1+1)}')
            if mask and u == 2:
                for r in range(2): b.e(f'v_cndmask_b32 {v(p0+r)}, 0, {v(p0+r)}, {s(sMZ,2)}')
            b.e(f'ds_write_b64 {v(vZW[t])}, {v(p0,2)} offset:{u*16*PITCH}')
    return b

def wsp_issue(c):
    b = B()
    for n in range(8):
        b.x(dma(vP[n], sWSP, s(sT0), sLB, LX + (c & 1)*8192 + n*1024, f'a{c}', f's_add_u32 {s(sT0)}, {s(sOFA)}, {c*128}' if n == 0 else 's_nop 0'))
    return b
def wsp_read(c):
    b = B(); b.x(WAITVM(f'a{c}'))
    for st in range(4):
        for tt in range(2):
            b.e(f'ds_read_b128 {a(32*c + 8*st + 4*tt, 4)}, {v(vAR[st])} offset:{(c&1)*8192 + tt*4096}')
    return b

def flag_store(soff_expr_instrs, tag):
    b = B(); b.x(soff_expr_instrs)
    b.e(f'buffer_store_dwordx2 v[4:5], v6, {s(sWS,4)}, {s(sT0)} offen sc1', tag)
    return b
def flag_regs(per_wave):
    b = B()
    b.e(f'v_mov_b32 v4, {s(sTAG)}'); b.e(f'v_mov_b32 v5, {s(sTAG)}')
    if per_wave: b.x(lane(6, 'l'))
    else: b.e('v_mov_b32 v6, v0')
    b.e('v_cmp_eq_u32 vcc, 0, v6'); b.e(f'v_mov_b32 v6, {OOB}'); b.e('v_cndmask_b32 v6, v6, 0, vcc')
    return b

def seg_z2():
    b = B()
    wimg = B()
    wimg.x(lane(1, 'h')); wimg.e(f's_lshl_b32 {s(sT0)}, {s(sWV)}, 1'); wimg.e(f'v_add_u32 v1, {s(sT0)}, v1')
    wimg.e('v_bfe_u32 v2, v0, 2, 3'); wimg.e('v_lshl_add_u32 v1, v1, 6, v2'); wimg.e('v_mul_u32_u24 v1, 514, v1')
    wimg.x(lane(2, 'cc')); wimg.e('v_lshl_add_u32 v1, v2, 4, v1')
    wimg.e(f's_andn2_b32 {s(sT0)}, {s(sI)}, 3'); wimg.e(f's_lshl_b32 {s(sT0)}, {s(sT0)}, 1')
    wimg.e(f's_and_b32 {s(sT1)}, {s(sI)}, 3'); wimg.e(f's_lshl_b32 {s(sT1)}, {s(sT1)}, 9'); wimg.e(f's_add_u32 {s(sT0)}, {s(sT0)}, {s(sT1)}')
    wimg.e(f's_mul_i32 {s(sT0)}, {s(sT0)}, 514'); wimg.e(f's_lshl_b32 {s(sT1)}, {s(sJ)}, 6'); wimg.e(f's_add_u32 {s(sT0)}, {s(sT0)}, {s(sT1)}')
    wimg.e(f's_add_u32 {s(sT0)}, {s(sT0)}, 2'); wimg.e(f's_lshl_b32 {s(sT1)}, {s(sWV)}, 10')
    wimg.x(dma(1, sWR, s(sT0), sT1, LWI, 'wimg', 's_nop 0')); wimg.x(dma(1, sWI, s(sT0), sT1, LWI + 4096, 'wimg', 's_nop 0'))
    b.x(z_loop(0, {5: ([], wimg)}))
    b.x(stamp())
    b.e(f'v_mov_b32 v7, {fl(1e-5)}')
    b.x(diag_select(1, 2)); b.x(mean_rstd(1, 2, 512, 3))
    b.x(lane(3, 'l15')); b.x(lane(4, 'q')); b.e('v_lshrrev_b32 v5, 2, v3'); b.e('v_cmp_eq_u32 vcc, v4, v5')
    b.e(f's_lshl_b32 {s(sT0)}, {s(sWV)}, 6'); b.e(f's_add_u32 {s(sT0)}, {s(sT0)}, {LXS}')
    b.e(f'v_lshl_add_u32 v5, v3, 2, {s(sT0)}'); b.x(lane(6, 'l')); b.e('v_lshlrev_b32 v6, 2, v6'); b.e(f'v_add_u32 v6, {LDUM}, v6')
    b.e('v_cndmask_b32 v5, v6, v5, vcc')
    b.e('ds_write_b32 v5, v1'); b.e('ds_write_b32 v5, v2 offset:256')
    b.e(f's_lshl_b32 {s(sT1)}, {s(sWV)}, 8'); b.e(f'v_lshl_add_u32 v5, v3, 4, {s(sT1)}'); b.e(f'v_mov_b32 v6, {OOB}')
    b.e(f'v_cndmask_b32 {v(vXB)}, v6, v5, vcc')
    b.e(f'v_lshl_add_u32 v5, v4, 4, {s(sT0)}'); b.e('v_xor_b32 v6, 64, v5')
    b.x(WAITVM('wimg'))
    b.x(barrier())
    for t, ad in ((0, 5), (1, 6)):
        b.e(f'ds_read_b128 {v(vR(t),4)}, {v(ad)}'); b.e(f'ds_read_b128 {v(vMR(t),4)}, {v(ad)} offset:256')
    b.x(w_dma(11))
    b.e(f's_lshl_b32 {s(sLB)}, {s(sWV)}, 14')
    b.e(f's_lshl_b32 {s(sOFA)}, {s(sI)}, 18'); b.e(f's_lshl_b32 {s(sT1)}, {s(sWV)}, 10'); b.e(f's_add_u32 {s(sOFA)}, {s(sOFA)}, {s(sT1)}')
    b.x(wsp_issue(4)); b.x(wsp_issue(5))
    b.x(gelu_epilogue(0, True))
    b.x(lane(1, 'q')); b.x(lane(2, 'rr')); b.e('v_lshl_add_u32 v1, v1, 3, v2'); b.e(f'v_mul_u32_u24 v1, {PITCH}, v1')
    b.x(lane(2, 'cc')); b.e('v_lshl_add_u32 v1, v2, 3, v1'); b.e(f's_lshl_b32 {s(sT0)}, {s(sWV)}, 5'); b.e(f's_add_u32 {s(sT0)}, {s(sT0)}, {LZ2}')
    b.e(f'v_add_u32 v1, {s(sT0)}, v1')
    b.x(barrier())
    for ks in range(3):
        for x in range(2): b.e(f'ds_read_b64_tr_b16 {v(WF+4*ks+2*x,2)}, v1 offset:{(32*ks+4*x)*PITCH}')
    for ks in range(3):
        f = v(WF+4*ks, 4)
        b.x(mfma16(vSUM, f, v(vONE, 4), '0' if ks == 0 else v(vSUM, 4))); b.x(mfma16(vGRAM, f, f, '0' if ks == 0 else v(vGRAM, 4)))
    b.e(f's_lshl_b32 {s(sT0)}, {s(sI)}, 3'); b.e(f's_add_u32 {s(sT0)}, {s(sT0)}, {s(sJ)}'); b.e(f's_lshl_b32 {s(sT0)}, {s(sT0)}, 10'); b.e(f's_add_u32 {s(sT0)}, {s(sT0)}, {WS_ST}')
    b.e(f'v_mov_b32 {v(WF+13)}, {s(sTAG)}'); b.e(f'v_mov_b32 {v(WF+15)}, {s(sTAG)}')
    b.x(diag_select(WF+12, WF+14))
    b.e(f'buffer_store_dwordx4 {v(WF+12,4)}, {v(vXB)}, {s(sWS,4)}, {s(sT0)} offen sc1', 'stpub')
    b.x(stamp())
    return b

def seg_wt():
    b = B()
    b.x(lane(1, 'rr')); b.x(lane(2, 'q')); b.e('v_lshlrev_b32 v1, 9, v1'); b.e('v_lshl_add_u32 v1, v2, 7, v1')
    b.x(lane(3, 'cc')); b.e('v_lshl_add_u32 v1, v3, 3, v1')
    b.e(f's_lshl_b32 {s(sT0)}, {s(sCH)}, 12'); b.e(f's_lshl_b32 {s(sT1)}, {s(sRH)}, 5'); b.e(f's_add_u32 {s(sT0)}, {s(sT0)}, {s(sT1)}'); b.e(f's_add_u32 {s(sT0)}, {s(sT0)}, {LWI}')
    b.e(f'v_add_u32 v1, {s(sT0)}, v1')
    for g in range(2):
        for x in range(2): b.e(f'ds_read_b64_tr_b16 {v(WF+4*g+2*x,2)}, v1 offset:{x*2048+g*64}')
    b.x(lane(3, 'l15')); b.e('v_lshlrev_b32 v3, 7, v3'); b.e('v_lshl_add_u32 v3, v2, 5, v3')
    b.e(f's_lshl_b32 {s(sT0)}, {s(sWV)}, 11'); b.e(f's_add_u32 {s(sT0)}, {s(sT0)}, {LY1}'); b.e(f'v_add_u32 v3, {s(sT0)}, v3')
    for g in range(2): b.e(f'ds_write_b128 v3, {v(WF+4*g,4)} offset:{16*g}')
    b.x(lane(4, 'l')); b.e(f'v_lshl_add_u32 v4, v4, 4, {s(sT0)}')
    b.x(WAITLG0())
    for n in range(2): b.e(f'ds_read_b128 {v(WF+8+4*n,4)}, v4 offset:{n*1024}')
    b.x(lane(1, 'l>>3')); b.x(lane(2, 'l7')); b.e('v_lshlrev_b32 v2, 4, v2'); b.e('v_lshl_add_u32 v1, v1, 13, v2')
    b.e(f's_lshl_b32 {s(sT0)}, {s(sRH)}, 17'); b.e(f's_lshl_b32 {s(sT1)}, {s(sCH)}, 10'); b.e(f's_add_u32 {s(sT0)}, {s(sT0)}, {s(sT1)}')
    b.e(f's_lshl_b32 {s(sT1)}, {s(sJ)}, 18'); b.e(f's_add_u32 {s(sT0)}, {s(sT0)}, {s(sT1)}')
    b.e(f's_lshr_b32 {s(sT1)}, {s(sI)}, 3'); b.e(f's_lshl_b32 {s(sT1)}, {s(sT1)}, 11'); b.e(f's_add_u32 {s(sT0)}, {s(sT0)}, {s(sT1)}')
    b.e(f's_and_b32 {s(sT1)}, {s(sI)}, 3'); b.e(f's_lshl_b32 {s(sT1)}, {s(sT1)}, 8'); b.e(f's_add_u32 {s(sT0)}, {s(sT0)}, {s(sT1)}')
    b.e(f's_and_b32 {s(sT1)}, {s(sI)}, 4'); b.e(f's_lshl_b32 {s(sT1)}, {s(sT1)}, 5'); b.e(f's_add_u32 {s(sT0)}, {s(sT0)}, {s(sT1)}')
    b.e(f's_add_u32 {s(sT0)}, {s(sT0)}, {WS_WT}'); b.e(f's_add_u32 {s(sT1)}, {s(sT0)}, 65536')
    b.e(f'buffer_store_dwordx4 {v(WF+8,4)}, v1, {s(sWS,4)}, {s(sT0)} offen sc1', 'pubA')
    b.e(f'buffer_store_dwordx4 {v(WF+12,4)}, v1, {s(sWS,4)}, {s(sT1)} offen sc1', 'pubA')
    return b

DA = lambda half, t, ri: 48 + ((half*2 + t)*2 + ri) * 4
GST = 80
def st_loads():
    return [f'buffer_load_dwordx4 {v(GST+4*g,4)}, {v(vXA)}, {s(sWS,4)}, {s(sK)} offen offset:{g*1024} sc1' for g in range(2)]
def seg_dft():
    b = B()
    for st in range(16):
        for t in range(2):
            for ri in range(2):
                d = DA(st >> 3, t, ri)
                b.x(mfma16(d, a(st*8+4*t, 4), v(DC(st & 7, ri), 4), '0' if (st & 7) == 0 else v(d, 4)))
    f = B()
    f.x(lane(1, 'l31')); f.e(f's_lshl_b32 {s(sT0)}, {s(sWV)}, 3'); f.e(f'v_xor_b32 v1, {s(sT0)}, v1')
    f.e('v_bfe_u32 v2, v1, 1, 3'); f.x(lane(3, 'h')); f.e('v_xor_b32 v2, v2, v3'); f.e('v_lshlrev_b32 v2, 4, v2')
    f.e('v_lshl_add_u32 v1, v1, 7, v2'); f.e(f'v_add_u32 {v(vAR[0])}, {s(sLB)}, v1')
    for st in range(1, 4): f.e(f'v_xor_b32 {v(vAR[st])}, {32*st}, {v(vAR[0])}')
    f.e('v_and_b32 v1, 1, v0'); f.e('v_lshlrev_b32 v1, 31, v1'); f.e('v_xor_b32 v2, 0xbf800000, v1'); f.e('v_mov_b32 v3, v2')
    f.x(lane(4, 'l15')); f.e(f'v_mul_u32_u24 v4, {2*PITCH}, v4'); f.x(lane(5, 'q')); f.e('v_lshl_add_u32 v4, v5, 3, v4')
    f.e(f's_mul_i32 {s(sT0)}, {s(sCH)}, {32*PITCH}'); f.e(f's_lshl_b32 {s(sT1)}, {s(sWV)}, 5'); f.e(f's_add_u32 {s(sT0)}, {s(sT0)}, {s(sT1)}'); f.e(f's_add_u32 {s(sT0)}, {s(sT0)}, {LY1}')
    f.e(f's_lshl_b32 {s(sT1)}, {s(sCH)}, 6'); f.e(f's_sub_u32 {s(sT1)}, 32, {s(sT1)}')
    f.e(f'v_add_u32 v4, {s(sT0)}, v4'); f.e(f'v_add_u32 v5, {s(sT1)}, v4')
    f.x(lane(vXA, 'l')); f.e(f'v_lshlrev_b32 {v(vXA)}, 4, {v(vXA)}')
    f.e(f's_lshl_b32 {s(sK)}, {s(sI)}, 13'); f.e(f's_lshl_b32 {s(sT1)}, {s(sWV)}, 11'); f.e(f's_add_u32 {s(sK)}, {s(sK)}, {s(sT1)}'); f.e(f's_add_u32 {s(sK)}, {s(sK)}, {WS_ST}')
    b = B(interleave(b, f, per=1))
    b.x(wsp_read(4)); b.x(wsp_read(5))
    b.x(barrier())
    b.x(wsp_issue(6)); b.x(wsp_issue(7))
    for l in st_loads(): b.e(l, 'stg')
    for t in range(2):
        for ri in range(2):
            d0, d1 = DA(0, t, ri), DA(1, t, ri)
            for o in (0, 2): b.e(f'v_pk_fma_f32 {v(d0+o,2)}, {v(d1+o,2)}, v[2:3], {v(d0+o,2)}')
            for o in (0, 2): b.e(f'v_pk_mul_f32 {v(d0+o,2)}, {v(d0+o,2)}, {v(vR(t)+o,2)}')
            b.e(f'v_cvt_pk_bf16_f32 {v(d1)}, {v(d0)}, {v(d0+1)}'); b.e(f'v_cvt_pk_bf16_f32 {v(d1+1)}, {v(d0+2)}, {v(d0+3)}')
            b.e(f'ds_write_b64 {v(4+t)}, {v(d1,2)} offset:{ri*PITCH}')
    b.e(f'v_add_u32 v1, {LY1}, {v(vLR)}')
    b.x(barrier())
    for n in range(2): b.e(f'ds_read_b128 {v(WF+4*n,4)}, v1 offset:{n*32*PITCH}')
    b.e(f's_lshl_b32 {s(sT0)}, {s(sJ)}, 18'); b.e(f's_lshl_b32 {s(sT1)}, {s(sI)}, 7'); b.e(f's_add_u32 {s(sT0)}, {s(sT0)}, {s(sT1)}'); b.e(f's_add_u32 {s(sT0)}, {s(sT0)}, {WS_Y1}')
    b.e(f's_add_u32 {s(sT1)}, {s(sT0)}, {32*4096}')
    for n in range(2): b.e(f'buffer_store_dwordx4 {v(WF+4*n,4)}, {v(vST)}, {s(sWS,4)}, {s(sT0+n)} offen sc1', 'pubA')
    b.x(stamp())
    return b

def seg_z2norm():
    b = B()
    b.x(poll_check(st_loads(), [GST+1, GST+3, GST+5, GST+7]))
    b.e(f'v_add_f32 {v(GST)}, {v(GST)}, {v(GST+4)}'); b.e(f'v_add_f32 {v(GST+1)}, {v(GST+2)}, {v(GST+6)}')
    b.x(lane(1, 'l')); b.e('v_lshlrev_b32 v1, 3, v1'); b.e(f'v_add_u32 v1, {LSC}, v1')
    b.e(f's_lshl_b32 {s(sT0)}, {s(sWV)}, 9'); b.e(f'v_add_u32 v2, {s(sT0)}, v1')
    b.e(f'ds_write_b64 v2, {v(GST,2)}')
    b.e(f'v_add_u32 v3, {LZ2}, {v(vLR)}')
    for n in range(3): b.e(f'ds_read_b128 {v(WF+4*n,4)}, v3 offset:{n*32*PITCH}')
    b.x(barrier())
    for g in range(4): b.e(f'ds_read_b64 {v(GST+2*g,2)}, v1 offset:{g*512}')
    b.e(f'v_mov_b32 v7, {fl(1e-5)}')
    b.e(f'v_pk_add_f32 {v(GST,2)}, {v(GST,2)}, {v(GST+2,2)}'); b.e(f'v_pk_add_f32 {v(GST+4,2)}, {v(GST+4,2)}, {v(GST+6,2)}')
    b.e(f'v_pk_add_f32 {v(GST,2)}, {v(GST,2)}, {v(GST+4,2)}')
    b.x(mean_rstd(GST, GST+1, 688, 3))
    b.x(lane(1, 'l')); b.e(f's_add_u32 {s(sT0)}, {s(sT0)}, {LWI}'); b.e(f'v_lshl_add_u32 v1, v1, 2, {s(sT0)}')
    b.e(f'ds_write_b32 v1, {v(GST)}'); b.e(f'ds_write_b32 v1, {v(GST+1)} offset:256')
    b.x(lane(2, 'l7')); b.e(f'v_lshl_add_u32 v2, v2, 5, {s(sT0)}')
    b.x(WAITLG0())
    RR, MM = 48, 56
    for k in range(2):
        b.e(f'ds_read_b128 {v(RR+4*k,4)}, v2 offset:{16*k}'); b.e(f'ds_read_b128 {v(MM+4*k,4)}, v2 offset:{256+16*k}')
    b.e(f's_mul_i32 {s(sT0)}, {s(sJ)}, {86*4096}'); b.e(f's_lshl_b32 {s(sT1)}, {s(sI)}, 7'); b.e(f's_add_u32 {s(sT0)}, {s(sT0)}, {s(sT1)}'); b.e(f's_add_u32 {s(sT0)}, {s(sT0)}, {WS_Z2}')
    b.e(f's_add_u32 {s(sT1)}, {s(sT0)}, {32*4096}'); b.e(f's_add_u32 {s(sT2)}, {s(sT0)}, {64*4096}')
    b.e(f'v_mov_b32 v4, {OOB}'); b.e(f'v_cmp_gt_u32 vcc, {22*8}, v0'); b.e(f'v_cndmask_b32 v4, v4, {v(vST)}, vcc')
    for n in range(3):
        u = 64
        for k in range(4):
            b.e(f'v_lshlrev_b32 {v(u+2*k)}, 16, {v(WF+4*n+k)}'); b.e(f'v_and_b32 {v(u+2*k+1)}, 0xffff0000, {v(WF+4*n+k)}')
        for k in range(4):
            b.e(f'v_pk_fma_f32 {v(u+2*k,2)}, {v(u+2*k,2)}, {v(RR+2*k,2)}, {v(MM+2*k,2)} neg_lo:[0,0,1] neg_hi:[0,0,1]')
        for k in range(4): b.e(f'v_cvt_pk_bf16_f32 {v(WF+12+4*n+k)}, {v(u+2*k)}, {v(u+2*k+1)}')
        b.e(f'buffer_store_dwordx4 {v(WF+12+4*n,4)}, {v(4 if n == 2 else vST)}, {s(sWS,4)}, {s(sT0+n)} offen sc1', 'pubZ')
    b.x(stamp())
    return b

def ji16(base):
    return B().e(f's_lshl_b32 {s(sT0)}, {s(sJ)}, 5').e(f's_add_u32 {s(sT0)}, {s(sT0)}, {s(sI)}').e(f's_lshl_b32 {s(sT0)}, {s(sT0)}, 4').e(f's_add_u32 {s(sT0)}, {s(sT0)}, {base}')
FA_LD = lambda: [f'buffer_load_dwordx2 v[18:19], v1, {s(sWS,4)}, {s(sK)} offen sc1']
def seg_z1():
    b = B()
    b.e(f's_mul_i32 {s(sT3)}, {s(sWV)}, 3072')
    fa = B().x(flag_regs(False)).x(flag_store(ji16(WS_FA), 'flag'))
    fz = B().x(flag_regs(False)).x(flag_store(ji16(WS_FZ), 'flag'))
    rd = B().x(wsp_read(6)).x(wsp_read(7))
    hooks = {9: ([WAITVM('pubA')], fa), 12: ([WAITVM('pubZ')], fz), 13: (rd, B().x(wsp_issue(0)).x(wsp_issue(1)))}
    b.x(z_loop(8, hooks))
    b.x(stamp())
    b.x(lane(1, 'h')); b.e('v_lshlrev_b32 v1, 3, v1'); b.e(f's_lshl_b32 {s(sT0)}, {s(sI)}, 7'); b.e(f's_lshl_b32 {s(sT1)}, {s(sWV)}, 4'); b.e(f's_add_u32 {s(sT0)}, {s(sT0)}, {s(sT1)}')
    for tt in range(2): b.e(f'buffer_load_dwordx2 {v(vBIAS+2*tt,2)}, v1, {s(sB,4)}, {s(sT0)} offen offset:{64*tt}', 'bias')
    b.x(lane(1, 'l31')); b.e('v_lshlrev_b32 v1, 4, v1'); b.e(f's_lshl_b32 {s(sK)}, {s(sJ)}, 9'); b.e(f's_add_u32 {s(sK)}, {s(sK)}, {WS_FA}')
    for l in FA_LD(): b.e(l, 'fa')
    b.x(wsp_read(0)); b.x(wsp_read(1)); b.x(WAITLG0());
    b.x(wsp_issue(2)); b.x(wsp_issue(3))
    b.x(gelu_epilogue(LZ1 - LZ2, False))
    b.x(stamp())
    return b

XF = lambda ri, mt, ks: 128 + ((ri*2 + mt)*2 + ks) * 4
PA = lambda ri, mt: 160 + (ri*2 + mt) * 4
PB = lambda ri: 176 + 4 * ri
WG = lambda ri: 184 + 4 * ri
def fft_reads(base, adr):
    b = B()
    for ks in range(2):
        for ri in range(2):
            for mt in range(2):
                for x in range(2): b.e(f'ds_read_b64_tr_b16 {v(XF(ri,mt,ks)+2*x,2)}, {v(adr)} offset:{base - LW + ri*4096 + (32*ks+4*x)*64 + 8*mt}')
    return b
def fft_big(sgn):
    b = B(); P, Q = (S64, N64) if sgn > 0 else (N64, S64)
    for ks in range(2):
        for mt in range(2):
            z = lambda r: '0' if ks == 0 else v(r, 4)
            b.x(mfma16(PA(0,mt), v(XF(0,mt,ks),4), v(C64(ks),4), z(PA(0,mt)))); b.x(mfma16(PA(1,mt), v(XF(1,mt,ks),4), v(C64(ks),4), z(PA(1,mt))))
        for mt in range(2):
            b.x(mfma16(PA(0,mt), v(XF(1,mt,ks),4), v(P(ks),4), v(PA(0,mt),4))); b.x(mfma16(PA(1,mt), v(XF(0,mt,ks),4), v(Q(ks),4), v(PA(1,mt),4)))
    return b
def fft_small(sgn):
    b = B(); P, Q = (S32, N32) if sgn > 0 else (N32, S32)
    for mt in range(2):
        b.x(mfma16(PA(0,mt), v(C32(mt),4), v(PB(0),4), '0')); b.x(mfma16(PA(1,mt), v(C32(mt),4), v(PB(1),4), '0'))
    for mt in range(2):
        b.x(mfma16(PA(0,mt), v(P(mt),4), v(PB(1),4), v(PA(0,mt),4))); b.x(mfma16(PA(1,mt), v(Q(mt),4), v(PB(0),4), v(PA(1,mt),4)))
    return b
def cmul(cr, ci, conj):
    b = B(); t = WF
    n1 = '' if conj else ' neg_lo:[1,0,0] neg_hi:[1,0,0]'
    n2 = ' neg_lo:[1,0,0] neg_hi:[1,0,0]' if conj else ''
    for k in range(4):
        re, im = PA(0, 0) + 2*k, PA(1, 0) + 2*k
        b.e(f'v_pk_mul_f32 {v(t+2*k,2)}, {v(re,2)}, {v(cr+2*k,2)}'); b.e(f'v_pk_mul_f32 {v(t+8+2*k,2)}, {v(im,2)}, {v(cr+2*k,2)}')
    for k in range(4):
        re, im = PA(0, 0) + 2*k, PA(1, 0) + 2*k
        b.e(f'v_pk_fma_f32 {v(t+2*k,2)}, {v(im,2)}, {v(ci+2*k,2)}, {v(t+2*k,2)}{n1}')
        b.e(f'v_pk_fma_f32 {v(t+8+2*k,2)}, {v(re,2)}, {v(ci+2*k,2)}, {v(t+8+2*k,2)}{n2}')
    for k in range(4):
        b.e(f'v_cvt_pk_bf16_f32 {v(PB(0)+k)}, {v(t+2*k)}, {v(t+2*k+1)}'); b.e(f'v_cvt_pk_bf16_f32 {v(PB(1)+k)}, {v(t+8+2*k)}, {v(t+8+2*k+1)}')
    return b
FZ_LD = lambda: [f'buffer_load_dwordx2 v[18:19], v15, {s(sWS,4)}, {s(sK)} offen sc1']
vBR = vAR
def b_issue(c):
    b = B()
    for n in range(11):
        b.x(dma(vP[n], sWS, s(sOFB), sRB, (c % 3)*RSLOT + n*1024, f'b{c}', None if n else f's_add_u32 {s(sOFB)}, {s(sOFB)}, 128'))
    return b
def seg_fft():
    b = B()
    b.x(poll_check(FA_LD(), [18, 19]))
    b.e(f's_lshl_b32 {s(sP)}, {s(sJ)}, 5'); b.e(f's_add_u32 {s(sP)}, {s(sP)}, {s(sI)}')
    b.e(f's_lshl_b32 {s(sT0)}, {s(sP)}, 13'); b.e(f's_lshl_b32 {s(sT1)}, {s(sWV)}, 11'); b.e(f's_add_u32 {s(sT0)}, {s(sT0)}, {s(sT1)}')
    b.e(f's_add_u32 {s(sT2)}, {s(sT0)}, {WS_WT}'); b.e(f's_add_u32 {s(sT0)}, {s(sT0)}, {WS_Y1}')
    b.x(lane(1, 'l')); b.e('v_lshlrev_b32 v1, 4, v1')
    b.x(barrier())
    b.x(dma(1, sWS, s(sT0), sT1, LFX, 'col', 's_nop 0'))
    b.e(f'buffer_load_dwordx4 v1, {s(sWS,4)}, {s(sT0)} offen offset:1024 lds', 'col')
    for ri in range(2): b.e(f'buffer_load_dwordx4 {v(WG(ri),4)}, v1, {s(sWS,4)}, {s(sT2)} offen offset:{1024*ri}', 'wg')
    b.x(lane(15, 'l7')); b.e('v_lshlrev_b32 v15, 4, v15')
    b.e(f's_lshl_b32 {s(sK)}, {s(sJ)}, 9'); b.e(f's_lshl_b32 {s(sT1)}, {s(sWV)}, 7'); b.e(f's_add_u32 {s(sK)}, {s(sK)}, {s(sT1)}'); b.e(f's_add_u32 {s(sK)}, {s(sK)}, {WS_FZ}')
    b.x(lane(2, 'q')); b.x(lane(3, 'rr')); b.e('v_lshl_add_u32 v3, v2, 3, v3'); b.x(lane(4, 'cc')); b.e('v_lshlrev_b32 v4, 4, v4')
    b.e('v_lshl_add_u32 v16, v3, 6, v4'); b.e(f'v_add_u32 v16, {LW}, v16')
    b.x(lane(3, 'l15')); b.e('v_lshlrev_b32 v3, 6, v3'); b.e('v_lshl_add_u32 v3, v2, 4, v3'); b.e(f's_lshl_b32 {s(sT1)}, {s(sWV)}, 10'); b.e(f's_add_u32 {s(sT1)}, {s(sT1)}, {LFE}')
    b.e(f'v_add_u32 v17, {s(sT1)}, v3')
    b.x(wsp_read(2)); b.x(wsp_read(3))
    b.x(WAITVM('col')); b.x(barrier())
    b.x(fft_reads(LFX, 16)); b.x(fft_big(+1))
    b.x(cmul(TC, TS, True)); b.x(fft_small(+1))
    U = 48
    for ri in range(2):
        for k in range(4):
            b.e(f'v_lshlrev_b32 {v(U+8*ri+2*k)}, 16, {v(WG(ri)+k)}'); b.e(f'v_and_b32 {v(U+8*ri+2*k+1)}, 0xffff0000, {v(WG(ri)+k)}')
    for l in FZ_LD(): b.e(l, 'fz')
    b.x(cmul(U, U+8, False)); b.x(fft_small(-1))
    b.x(cmul(TC, TS, False))
    for ri in range(2): b.e(f'ds_write_b128 v17, {v(PB(ri),4)} offset:{4096*ri}')
    b.x(barrier())
    b.x(fft_reads(LFE, 16))
    b.e(f's_mul_i32 {s(sRB)}, {s(sWV)}, {RING}')
    b.e(f's_mul_i32 {s(sOFB)}, {s(sJ)}, {86*4096}'); b.e(f's_lshl_b32 {s(sT1)}, {s(sWV)}, 10'); b.e(f's_add_u32 {s(sOFB)}, {s(sOFB)}, {s(sT1)}'); b.e(f's_add_u32 {s(sOFB)}, {s(sOFB)}, {WS_Z2 - 128}')
    b.x(lane(1, 'l31')); b.e('v_bfe_u32 v2, v1, 1, 3'); b.x(lane(3, 'h')); b.e('v_xor_b32 v2, v2, v3'); b.e('v_lshlrev_b32 v2, 4, v2')
    b.e('v_lshl_add_u32 v1, v1, 7, v2')
    b.x(barrier())
    b.e(f'v_add_u32 {v(vBR[0])}, {s(sRB)}, v1')
    for st in range(1, 4): b.e(f'v_xor_b32 {v(vBR[st])}, {32*st}, {v(vBR[0])}')
    b.x(poll_check(FZ_LD(), [18, 19]))
    b.x(stamp())
    for c in range(3): b.x(b_issue(c))
    b.x(fft_big(-1))
    b.e(f's_add_u32 {s(sT0)}, {s(sP)}, 1'); b.e(f's_sub_u32 {s(sT1)}, 384, {s(sT0)}'); b.e(f's_and_b32 {s(sP)}, {s(sT0)}, 127')
    b.e(f's_cmp_gt_u32 {s(sT0)}, 128'); b.e(f's_cselect_b32 {s(sP)}, {s(sT1)}, {s(sP)}'); b.e(f's_cselect_b32 {s(sT2)}, 0x80008000, 0')
    b.x(lane(1, 'l15')); b.e('v_lshrrev_b32 v2, 1, v1'); b.e(f'v_xor_b32 v1, {s(sP)}, v1'); b.e('v_and_b32 v1, 1, v1'); b.e('v_lshlrev_b32 v1, 6, v1')
    b.e('v_lshl_add_u32 v1, v2, 16, v1'); b.x(lane(2, 'q')); b.e('v_lshl_add_u32 v1, v2, 4, v1')
    b.e(f's_lshl_b32 {s(sT0)}, {s(sWV)}, 19'); b.e(f's_lshl_b32 {s(sT1)}, {s(sP)}, 8'); b.e(f's_add_u32 {s(sT0)}, {s(sT0)}, {s(sT1)}'); b.e(f's_add_u32 {s(sT0)}, {s(sT0)}, {WS_Y2}')
    for ri in range(2):
        for k in range(4): b.e(f'v_cvt_pk_bf16_f32 {v(PB(ri)+k)}, {v(PA(ri,0)+2*k)}, {v(PA(ri,0)+2*k+1)}')
    for k in range(4): b.e(f'v_xor_b32 {v(PB(1)+k)}, {s(sT2)}, {v(PB(1)+k)}')
    for ri in range(2): b.e(f'buffer_store_dwordx4 {v(PB(ri),4)}, v1, {s(sWS,4)}, {s(sT0)} offen offset:{128*ri} sc1', 'pubY')
    return b

G2 = lambda tt, ft: 128 + (tt*3 + ft) * 16
BF = lambda buf, ft: 224 + (buf*3 + ft) * 4
IC = lambda st: 24 + 4 * st
ICP = 88
def seg_gemm2():
    b = B()
    pre = B()
    pre.x(lane(1, 'l31')); pre.e('v_bfe_u32 v2, v1, 2, 1'); pre.e('v_lshrrev_b32 v3, 3, v1'); pre.e('v_and_b32 v1, 3, v1')
    pre.e('v_lshl_add_u32 v1, v2, 4, v1'); pre.e('v_lshl_add_u32 v1, v3, 2, v1')
    pre.e(f's_lshl_b32 {s(sT0)}, {s(sJ3)}, 6'); pre.e(f's_lshl_b32 {s(sT1)}, {s(sCH)}, 5'); pre.e(f's_add_u32 {s(sT0)}, {s(sT0)}, {s(sT1)}')
    pre.e(f'v_add_u32 v1, {s(sT0)}, v1'); pre.e('v_cvt_f32_u32 v1, v1'); pre.e(f'v_mul_f32 v15, {fl(-1/512)}, v1')
    pre.x(lane(2, 'h')); pre.e('v_cmp_eq_u32 vcc, 0, v2'); pre.e('v_cvt_f32_u32 v2, v2'); pre.e('v_mul_f32 v2, 4.0, v2'); pre.e('v_mul_f32 v16, v15, v2')
    pre.e(f'v_mul_f32 v17, {fl(128.0)}, v15'); pre.e('v_cndmask_b32 v17, v16, v17, vcc')
    pre.e(f's_mov_b64 {s(sMZ,2)}, vcc')
    b.x(pre)
    def consts(lo, hi):
        f = B(); pend = []
        for n in range(lo, hi):
            st, e2 = n >> 2, n & 3
            t = 248 + 3 * (n & 1)
            if n == 0: f.e(f'v_mov_b32 {v(t)}, v17')
            else: f.e(f'v_fmamk_f32 {v(t)}, v15, {fl(float(8*st+e2))}, v16')
            f.x(pend)
            f.e(f'v_cos_f32 {v(t+1)}, {v(t)}'); f.e(f'v_sin_f32 {v(t+2)}, {v(t)}')
            pend = [I(f'v_cvt_pk_bf16_f32 {v(IC(st)+e2)}, {v(t+1)}, {v(t+2)}')]
        f.e('s_nop 0'); f.x(pend)
        return f
    def reads(c, st):
        r = B()
        for ft in range(3): r.e(f'ds_read_b128 {v(BF((4*c+st)&1, ft),4)}, {v(vBR[st])} offset:{(c%3)*RSLOT + ft*4096}')
        return r
    def mm(c, st):
        r = B(); k = 4*c + st
        for ft in range(3):
            for tt in range(2):
                r.x(mfma32(G2(tt,ft), a(32*c+8*st+4*tt, 4), v(BF(k&1, ft),4), '0' if k == 0 else v(G2(tt,ft),16)))
        return r
    b.x(WAITVM('b0')); b.x(reads(0, 0))
    for c in range(8):
        body = B()
        for st in range(4):
            if st < 3: nxt = reads(c, st+1)
            elif c < 7: nxt = B().x(WAITVM(f'b{c+1}')).x(reads(c+1, 0))
            else: nxt = B()
            m = mm(c, st)
            body.x(m[0]); body.x(nxt); body.x(m[1:])
        fill = B()
        if c >= 1 and c + 2 < 8: fill.x(b_issue(c + 2))
        if c == 2:
            fill.x(WAITVM('pubY')); fill.x(flag_regs(True))
            fill.x(flag_store(B().e(f's_lshl_b32 {s(sT0)}, {s(sWV)}, 8').e(f's_add_u32 {s(sT0)}, {s(sT0)}, {s(sP)}').e(f's_lshl_b32 {s(sT0)}, {s(sT0)}, 4').e(f's_add_u32 {s(sT0)}, {s(sT0)}, {WS_FY}'), 'flag'))
        fill.x(consts(8*c, 8*c+8))
        b.x(interleave(body, fill, start=1))
    b.x(stamp())
    b.x(lane(1, 'l')); b.e(f'v_lshl_add_u32 v1, v1, 4, {s(sRB)}')
    for jj in range(1, 4):
        for tt in range(2):
            for ft in range(3): b.e(f'ds_write_b128 v1, {v(G2(tt,ft)+4*jj,4)} offset:{((jj-1)*6 + tt*3+ft)*1024}')
    b.x(lane(2, 'l')); b.e('v_lshlrev_b32 v2, 4, v2')
    for jj in range(1, 4):
        b.e(f's_xor_b32 {s(sT0)}, {s(sWV)}, {jj}'); b.e(f's_mul_i32 {s(sT0)}, {s(sT0)}, {RING}'); b.e(f'v_add_u32 {v(2+jj)}, {s(sT0)}, v2')
    b.x(lane(6, 'l31')); b.e(f'v_mul_u32_u24 v6, {PITCH}, v6'); b.x(lane(7, 'h')); b.e('v_lshl_add_u32 v6, v7, 3, v6')
    b.e(f's_lshl_b32 {s(sT0)}, {s(sWV)}, 4'); b.e(f's_add_u32 {s(sT0)}, {s(sT0)}, {LZ1}'); b.e(f'v_add_u32 v6, {s(sT0)}, v6')
    ZR = 224
    for tt in range(2):
        for ft in range(3): b.e(f'ds_read_b64 {v(ZR+2*(tt*3+ft),2)}, v6 offset:{32*ft*PITCH + 64*tt}')
    BI = 240
    for tt in range(2):
        for k in range(2):
            b.e(f'v_lshlrev_b32 {v(BI+4*tt+2*k)}, 16, {v(vBIAS+2*tt+k)}'); b.e(f'v_and_b32 {v(BI+4*tt+2*k+1)}, 0xffff0000, {v(vBIAS+2*tt+k)}')
    b.x(barrier())
    for tt in range(2):
        for ft in range(3):
            for jj in range(1, 4): b.e(f'ds_read_b128 {v(G2(tt,ft)+4*jj,4)}, {v(2+jj)} offset:{((jj-1)*6 + tt*3+ft)*1024}')
    b.e(f'v_mov_b32 v1, {s(sTAG)}'); b.e('v_or_b32 v2, s2, v0'); b.e('v_cmp_eq_u32 vcc, 0, v2'); b.e(f'v_mov_b32 v2, {OOB}'); b.e('v_cndmask_b32 v2, v2, 0, vcc')
    b.e(f'buffer_store_dword v1, v2, {s(sWS,4)}, 0 offen sc1', 'flag')
    for tt in range(2):
        for ft in range(3):
            g = G2(tt, ft); z = ZR + 2*(tt*3+ft); t = 248
            for o in (0, 2): b.e(f'v_pk_add_f32 {v(g+o,2)}, {v(g+o,2)}, {v(BI+4*tt+o,2)}')
            for o in (0, 2): b.e(f'v_pk_add_f32 {v(g+4+o,2)}, {v(g+4+o,2)}, {v(g+8+o,2)}')
            for o in (0, 2): b.e(f'v_pk_add_f32 {v(g+o,2)}, {v(g+o,2)}, {v(g+12+o,2)}')
            for k in range(2):
                b.e(f'v_lshlrev_b32 {v(t+2*k)}, 16, {v(z+k)}'); b.e(f'v_and_b32 {v(t+2*k+1)}, 0xffff0000, {v(z+k)}')
            for o in (0, 2): b.e(f'v_pk_add_f32 {v(g+o,2)}, {v(g+o,2)}, {v(g+4+o,2)}')
            for o in (0, 2): b.e(f'v_pk_mul_f32 {v(g+o,2)}, {v(g+o,2)}, {v(t+o,2)}')
            b.e(f'v_cvt_pk_bf16_f32 {v(z)}, {v(g)}, {v(g+1)}'); b.e(f'v_cvt_pk_bf16_f32 {v(z+1)}, {v(g+2)}, {v(g+3)}')
            b.e(f'ds_write_b64 v6, {v(z,2)} offset:{32*ft*PITCH + 64*tt}')
    b.e('v_lshrrev_b32 v1, 4, v0'); b.e(f'v_add_u32 v1, {s(sJ)}, v1'); b.e('v_and_b32 v1, 1, v1'); b.e('v_lshlrev_b32 v1, 6, v1')
    b.e('v_lshlrev_b32 v2, 4, v0'); b.e('v_xor_b32 v1, v1, v2')
    b.e(f'v_mov_b32 v2, {OOB}'); b.e(f'v_cmp_gt_u32 vcc, {22*8}, v0'); b.e('v_cndmask_b32 v2, v2, v1, vcc')
    b.e(f'v_add_u32 v3, {LZ1}, {v(vLR)}')
    b.e(f's_mul_i32 {s(sT0)}, {s(sI)}, 88064'); b.e(f's_mul_i32 {s(sT1)}, {s(sJ)}, {86*128}'); b.e(f's_add_u32 {s(sT0)}, {s(sT0)}, {s(sT1)}'); b.e(f's_add_u32 {s(sT0)}, {s(sT0)}, {WS_U}')
    b.e(f's_add_u32 {s(sT1)}, {s(sT0)}, 4096'); b.e(f's_add_u32 {s(sT2)}, {s(sT0)}, 8192')
    b.x(barrier())
    for n in range(3): b.e(f'ds_read_b128 {v(128+4*n,4)}, v3 offset:{n*32*PITCH}')
    for n in range(3): b.e(f'buffer_store_dwordx4 {v(128+4*n,4)}, {v(2 if n == 2 else 1)}, {s(sWS,4)}, {s(sT0+n)} offen sc1', 'pubU')
    b.x(stamp())
    return b

SO, S1, S2 = 128, 144, 160
XR = 176
UF = lambda k: 192 + 4 * (k & 3)
FY_LD = lambda: [f'buffer_load_dwordx2 v[18:19], v15, {s(sWS,4)}, {s(sK)} offen sc1']
FU_LD = lambda: [f'buffer_load_dwordx2 v[18:19], v15, {s(sWS,4)}, {s(sK)} offen sc1']
def seg_phase3():
    b = B()
    b.x(lane(15, 'l')); b.e('v_lshlrev_b32 v15, 4, v15')
    b.e(f's_lshr_b32 {s(sK)}, {s(sI3)}, 3'); b.e(f's_lshl_b32 {s(sK)}, {s(sK)}, 2'); b.e(f's_add_u32 {s(sK)}, {s(sK)}, {s(sWV)}'); b.e(f's_lshl_b32 {s(sK)}, {s(sK)}, 10'); b.e(f's_add_u32 {s(sK)}, {s(sK)}, {WS_FY}')
    for l in FY_LD(): b.e(l, 'fy')
    b.x(lane(1, 'l>>3')); b.x(lane(2, 'l7')); b.e('v_bfe_u32 v3, v0, 4, 1'); b.e('v_lshlrev_b32 v3, 2, v3'); b.e('v_xor_b32 v2, v2, v3'); b.e('v_lshlrev_b32 v2, 4, v2')
    b.e('v_lshl_add_u32 v8, v1, 10, v2')
    b.e(f's_lshl_b32 {s(sOFW)}, {s(sJ3)}, 7'); b.e(f's_lshl_b32 {s(sT1)}, {s(sWV)}, 13'); b.e(f's_add_u32 {s(sOFW)}, {s(sOFW)}, {s(sT1)}')
    b.e(f's_lshl_b32 {s(sLB)}, {s(sWV)}, 10')
    def wo(m):
        return dma(8, sWO, s(sT0), sLB, LWO + m*4096, 'wo', f's_add_u32 {s(sT0)}, {s(sOFW)}, {m*32768}')
    for m in range(20): b.x(wo(m))
    b.x(lane(1, 'l31')); b.x(lane(2, 'h')); b.e('v_lshlrev_b32 v2, 5, v2'); b.e('v_lshl_add_u32 v9, v1, 10, v2')
    b.e(f's_lshl_b32 {s(sOFX)}, {s(sI3)}, 16'); b.e(f's_lshl_b32 {s(sT1)}, {s(sRH)}, 15'); b.e(f's_add_u32 {s(sOFX)}, {s(sOFX)}, {s(sT1)}')
    b.e(f's_lshl_b32 {s(sT1)}, {s(sJ3)}, 7'); b.e(f's_add_u32 {s(sOFX)}, {s(sOFX)}, {s(sT1)}'); b.e(f's_lshl_b32 {s(sT1)}, {s(sCH)}, 6'); b.e(f's_add_u32 {s(sOFX)}, {s(sOFX)}, {s(sT1)}')
    b.x(flag_regs(False))
    b.x(WAITVM('pubU')); b.x(barrier())
    b.x(flag_store(B().e(f's_lshl_b32 {s(sT0)}, {s(sI)}, 3').e(f's_add_u32 {s(sT0)}, {s(sT0)}, {s(sJ)}').e(f's_lshl_b32 {s(sT0)}, {s(sT0)}, 4').e(f's_add_u32 {s(sT0)}, {s(sT0)}, {WS_FU}'), 'flag'))
    b.x(stamp())
    for m in (20, 21): b.x(wo(m))
    b.x(poll_check(FY_LD(), [18, 19]))
    b.e(f's_lshl_b32 {s(sOFA)}, {s(sI3)}, 16'); b.e(f's_lshl_b32 {s(sT1)}, {s(sWV)}, 14'); b.e(f's_add_u32 {s(sOFA)}, {s(sOFA)}, {s(sT1)}'); b.e(f's_add_u32 {s(sOFA)}, {s(sOFA)}, {WS_Y2}')
    for m in range(16):
        if m % 4 == 0:
            b.e(f's_add_u32 m0, {s(sT1)}, {LY2 + m*1024}'); b.e(f's_add_u32 {s(sT0)}, {s(sOFA)}, {m*1024}')
        b.e(f'buffer_load_dwordx4 v15, {s(sWS,4)}, {s(sT0)} offen offset:{(m%4)*1024} lds', 'y2')
    for k in range(2): b.e(f'buffer_load_dwordx4 {v(XR+4*k,4)}, v9, {s(sX,4)}, {s(sOFX)} offen offset:{16*k}', 'xr')
    b.x(lane(1, 'h')); b.x(lane(2, 'rr')); b.e('v_lshl_add_u32 v1, v1, 3, v2'); b.e('v_lshlrev_b32 v1, 7, v1')
    b.e('v_lshrrev_b32 v2, 1, v2')
    b.e(f'v_xor_b32 v3, {s(sRH)}, v2'); b.e('v_lshl_add_u32 v3, v3, 6, v1')
    b.e('v_bfe_u32 v4, v0, 4, 1'); b.x(lane(5, 'cc'))
    b.e('v_lshl_add_u32 v3, v4, 5, v3'); b.e('v_lshl_add_u32 v10, v5, 3, v3'); b.e('v_add_u32 v11, 65536, v10')
    b.e(f'v_xor_b32 v3, {s(sCH)}, v2'); b.e('v_lshl_add_u32 v3, v3, 6, v1')
    b.e('v_lshl_add_u32 v3, v4, 4, v3'); b.e('v_and_b32 v6, 1, v5'); b.e('v_lshl_add_u32 v3, v6, 5, v3'); b.e('v_lshrrev_b32 v6, 1, v5'); b.e('v_lshl_add_u32 v3, v6, 3, v3')
    b.e(f'v_add_u32 v12, {LWO}, v3'); b.e('v_add_u32 v13, 65536, v12')
    b.e('v_mov_b32 v1, 0x3f00'); b.e(f'v_cndmask_b32 {v(ICP)}, {v(IC(0))}, v1, {s(sMZ,2)}')
    for r in range(1, 4): b.e(f'v_mov_b32 {v(ICP+r)}, {v(IC(0)+r)}')
    b.x(lane(15, 'l7')); b.e('v_lshlrev_b32 v15, 4, v15'); b.e(f's_lshl_b32 {s(sK)}, {s(sI3)}, 7'); b.e(f's_add_u32 {s(sK)}, {s(sK)}, {WS_FU}')
    def fr(dst, base_regs, k):
        off = k * 2048; ad = base_regs[0]
        if off >= 65536: off -= 65536; ad = base_regs[1]
        return [I(f'ds_read_b64_tr_b16 {dst(0)}, {v(ad)} offset:{off}'), I(f'ds_read_b64_tr_b16 {dst(2)}, {v(ad)} offset:{off+512}')]
    b.x(WAITVM('wo')); b.x(barrier())
    for k in range(43): b.x(fr(lambda o: a(4*k+o, 2), (12, 13), k))
    b.x(WAITVM('y2')); b.x(barrier())
    for l in FU_LD(): b.e(l, 'fu')
    for k in range(3): b.x(fr(lambda o: v(UF(k)+o, 2), (10, 11), k))
    for k in range(32):
        if k + 3 < 32: b.x(fr(lambda o: v(UF(k+3)+o, 2), (10, 11), k+3))
        d = S1 if k < 16 else S2
        c = ICP if k == 16 else IC(k & 15)
        b.x(mfma32(d, v(c, 4), v(UF(k), 4), '0' if (k & 15) == 0 else v(d, 16)))
    b.x(barrier())
    b.x(stamp())
    b.x(poll_check(FU_LD(), [18, 19]))
    b.x(stamp())
    b.x(lane(14, 'l')); b.e('v_lshlrev_b32 v14, 4, v14')
    b.e(f's_mul_i32 {s(sOFA)}, {s(sI3)}, 88064'); b.e(f's_add_u32 {s(sOFA)}, {s(sOFA)}, {s(sLB)}'); b.e(f's_add_u32 {s(sOFA)}, {s(sOFA)}, {WS_U}')
    b.e(f'v_mov_b32 v1, {OOB}'); b.e(f's_cmp_lt_u32 {s(sWV)}, 2'); b.e(f's_cselect_b64 vcc, -1, 0'); b.e('v_cndmask_b32 v16, v1, v14, vcc')
    for m in range(22):
        b.x(dma(16 if m == 21 else 14, sWS, s(sT0), sLB, LU + m*4096, f'u{m//4}', f's_add_u32 {s(sT0)}, {s(sOFA)}, {m*4096}'))
    b.e(f's_mov_b32 {s(sK2)}, {fl(2.0**-19)}'); b.e(f's_mov_b32 {s(sK2+1)}, {fl(2.0**-19)}')
    for r in range(0, 16, 2): b.e(f'v_pk_add_f32 {v(S1+r,2)}, {v(S1+r,2)}, {v(S2+r,2)} neg_hi:[0,1]')
    for r in range(0, 16, 2): b.e(f'v_pk_mul_f32 {v(S1+r,2)}, {v(S1+r,2)}, {s(sK2,2)}')
    for r in range(8):
        b.e(f'v_lshlrev_b32 {v(S2+2*r)}, 16, {v(XR+r)}'); b.e(f'v_and_b32 {v(S2+2*r+1)}, 0xffff0000, {v(XR+r)}')
    for g in range(6):
        ks = list(range(8*g, min(8*g+8, 43)))
        b.x(WAITVM(f'u{g}')); b.x(barrier())
        for k in ks[:3]: b.x(fr(lambda o: v(UF(k)+o, 2), (10, 11), k))
        for n, k in enumerate(ks):
            if n + 3 < len(ks): b.x(fr(lambda o: v(UF(k+3)+o, 2), (10, 11), k+3))
            b.x(mfma32(SO, a(4*k, 4), v(UF(k), 4), '0' if k == 0 else v(SO, 16)))
    b.x(stamp())
    E = 192
    b.e(f's_mov_b32 {s(sK2)}, {fl(-1.4426950409)}'); b.e(f's_mov_b32 {s(sK2+1)}, {fl(-1.4426950409)}')
    for hf in range(2):
        o = 8 * hf
        for r in range(o, o+8, 2): b.e(f'v_pk_mul_f32 {v(E+r,2)}, {v(SO+r,2)}, {s(sK2,2)}')
        for r in range(o, o+8): b.e(f'v_exp_f32 {v(E+r)}, {v(E+r)}')
        for r in range(o, o+8, 2): b.e(f'v_pk_mul_f32 {v(SO+r,2)}, {v(SO+r,2)}, {v(S1+r,2)}')
        for r in range(o, o+8, 2): b.e(f'v_pk_add_f32 {v(E+r,2)}, {v(E+r,2)}, {s(sONE,2)}')
        for r in range(o, o+8): b.e(f'v_rcp_f32 {v(E+r)}, {v(E+r)}')
        b.e('s_nop 0')
        for r in range(o, o+8, 2): b.e(f'v_pk_fma_f32 {v(SO+r,2)}, {v(SO+r,2)}, {v(E+r,2)}, {v(S2+r,2)}')
        for r in range(4): b.e(f'v_cvt_pk_bf16_f32 {v(XR+4*hf+r)}, {v(SO+o+2*r)}, {v(SO+o+2*r+1)}')
        b.e(f'buffer_store_dwordx4 {v(XR+4*hf,4)}, v9, {s(sOUT,4)}, {s(sOFX)} offen offset:{16*hf}', 'out')
    return b

def seg_stamps_out():
    b = B()
    if not OPT['stamps']: return b
    b.x(WAITVM0()); b.x(stamp())
    b.x(RAW('s_memrealtime s[100:101]')); b.x(RAW('s_waitcnt lgkmcnt(0)'))
    for k in range(16): b.e(f'v_mov_b32 {v(128+k)}, {s(sST+k)}')
    b.e('v_mov_b32 v144, s3'); b.e('v_mov_b32 v145, s4'); b.e('v_mov_b32 v146, s100'); b.e('v_mov_b32 v147, s5')
    b.x(lane(1, 'l')); b.e('v_cmp_eq_u32 vcc, 0, v1'); b.e(f'v_mov_b32 v2, {OOB}'); b.e('v_cndmask_b32 v2, v2, 0, vcc')
    b.e(f's_lshl_b32 {s(sT0)}, s2, 2'); b.e(f's_add_u32 {s(sT0)}, {s(sT0)}, {s(sWV)}'); b.e(f's_lshl_b32 {s(sT0)}, {s(sT0)}, 7'); b.e(f's_add_u32 {s(sT0)}, {s(sT0)}, {WS_DBG}')
    for k in range(5): b.e(f'buffer_store_dwordx4 {v(128+4*k,4)}, v2, {s(sWS,4)}, {s(sT0)} offen offset:{16*k}')
    return b

HEADER = open(os.path.join(os.path.dirname(os.path.abspath(__file__)), 'header.txt')).read()
def build(**opt):
    OPT.update(stamps=False, stop=None); OPT.update(opt)
    nstamp[0] = 0; lab[0] = 0
    p = B()
    if OPT['stamps']:
        p.x(RAW('s_memrealtime s[4:5]')); p.x(RAW('s_memtime s[6:7]')); p.x(RAW('s_waitcnt lgkmcnt(0)')); p.x(RAW('s_mov_b32 s3, s4')); p.x(RAW('s_mov_b32 s4, s6'))
        p.x(RAW('s_getreg_b32 s5, hwreg(HW_REG_XCC_ID)'))
    segs = [seg_init, seg_consts, stamp, seg_z2, seg_wt, seg_dft, seg_z2norm, seg_z1, seg_fft, seg_gemm2, seg_phase3]
    for f in segs:
        p.x(RAW(f'; ---- {f.__name__}'))
        p.x(f())
        if OPT['stop'] == f.__name__: break
    p.x(seg_stamps_out())
    p = resolve_waits(p)
    p, nops = fix_hazards(p)
    txt = HEADER + f'''; @launch grid=(256,1,1) block=(256,1,1) lds={LDS_BYTES}
.amdgcn_target "amdgcn-amd-amdhsa--gfx950"
.text
.globl {NAME}
.p2align 8
.type {NAME},@function
{NAME}:
{render(p)}
L_end:
    s_endpgm
.section .rodata,"a"
.p2align 6
.amdhsa_kernel {NAME}
  .amdhsa_next_free_vgpr 512
  .amdhsa_next_free_sgpr 102
  .amdhsa_accum_offset 256
  .amdhsa_group_segment_fixed_size 0
  .amdhsa_kernarg_size 88
  .amdhsa_user_sgpr_count 2
  .amdhsa_user_sgpr_kernarg_segment_ptr 1
  .amdhsa_system_sgpr_workgroup_id_x 1
.end_amdhsa_kernel
'''
    return txt, nops, len(p)

if __name__ == '__main__':
    out = sys.argv[1] if len(sys.argv) > 1 else 'recurrent_scan__spectral_gfnet__mixer_gmlp__prompt.s'
    opt = {}
    for o in sys.argv[2:]:
        k, val = o.split('='); opt[k] = {'1': True, '0': False}.get(val, val)
    txt, nops, n = build(**opt)
    open(out, 'w').write(txt)
    print('instructions', n, 'nop states', nops, 'bytes', len(txt))
```
